```python
import torch

def _softmax(x, axis=-1):
    return torch.softmax(x, dim=axis)
def _gelu(x):
    return torch.nn.functional.gelu(x, approximate="tanh")
def _silu(x):
    return torch.nn.functional.silu(x)
def _sigmoid(x):
    return torch.sigmoid(x)
def _layernorm(x, axis=-1, eps=1e-5):
    m = x.mean(dim=axis, keepdim=True)
    v = x.var(dim=axis, keepdim=True, unbiased=False)
    return (x - m) / torch.sqrt(v + eps)
def _scatter_add(tgt, idx, src, axis=0):
    return tgt.clone().index_add_(axis, idx, src)
def _segment_sum(src, seg, n):
    out = torch.zeros((n,) + src.shape[1:], dtype=src.dtype)
    return out.index_add_(0, seg, src)
def _pad(x, pw):
    flat = tuple(v for pair in reversed(pw) for v in pair)
    return torch.nn.functional.pad(x, flat)

kernel_name = 'interleave_layers__sliding_local_dilated__swiglu_ffn__prompt'

def setup_inputs():

    _w = (lambda a: (lambda t: t.to(torch.bfloat16) if t.is_floating_point() else t)(torch.as_tensor(a)))
    def _A_setup():
        B, S, D = 1, 2048, 576
        return {
            "x": _w((lambda *s: torch.randn(*s, dtype=torch.bfloat16) * 0.05)(B, S, D)),
            "wqkv": _w((lambda *s: torch.randn(*s, dtype=torch.bfloat16) * 0.05)(D, 3 * D)),
            "wo": _w((lambda *s: torch.randn(*s, dtype=torch.bfloat16) * 0.05)(D, D)),
        }
    _A_in = _A_setup()

    def _B_setup():
        B, S, D, F = 1, 2048, 576, 4608
        return {
            "x": _w((lambda *s: torch.randn(*s, dtype=torch.bfloat16) * 0.05)(B, S, D)),
            "w_gate": _w((lambda *s: torch.randn(*s, dtype=torch.bfloat16) * 0.05)(D, F)),
            "w_up": _w((lambda *s: torch.randn(*s, dtype=torch.bfloat16) * 0.05)(D, F)),
            "w_down": _w((lambda *s: torch.randn(*s, dtype=torch.bfloat16) * 0.05)(F, D)),
        }
    _B_in = _B_setup()

    return {
        "A_x": _A_in["x"],
        "A_wqkv": _A_in["wqkv"],
        "A_wo": _A_in["wo"],
        "B_x": _B_in["x"],
        "B_w_gate": _B_in["w_gate"],
        "B_w_up": _B_in["w_up"],
        "B_w_down": _B_in["w_down"],
    }

def reference(A_x, A_wqkv, A_wo, B_x, B_w_gate, B_w_up, B_w_down):
    def _A_ref(x, wqkv, wo):
        B, S, D = x.shape
        H = 32; Dh = D // H
        W, dil = 8, 2
        qkv = (lambda x, *d: x.permute(*d))((x @ wqkv).reshape(B, S, 3, H, Dh), 2, 0, 3, 1, 4)
        q, k, v = qkv[0], qkv[1], qkv[2]
        scale = Dh ** -0.5
        pos = torch.arange(S)
        off = torch.arange(W) * dil
        idx = pos[:, None] - off[None, :]
        mask = idx >= 0
        idx_c = torch.where(mask, idx, 0).reshape(-1)
        kg = k[:, :, idx_c, :].reshape(B, H, S, W, Dh)
        vg = v[:, :, idx_c, :].reshape(B, H, S, W, Dh)
        logits = torch.einsum("bhsd,bhswd->bhsw", q, kg) * scale
        logits = torch.where(mask[None, None, :, :], logits, -1e9)
        attn = _softmax(logits, axis=-1)
        o = torch.einsum("bhsw,bhswd->bhsd", attn, vg)
        return (lambda x, *d: x.permute(*d))(o, 0, 2, 1, 3).reshape(B, S, D) @ wo

    def _B_ref(x, w_gate, w_up, w_down):
        g = _silu(x @ w_gate)
        u = x @ w_up
        return (g * u) @ w_down

    x = A_x
    x = x + _A_ref(_layernorm(x, axis=-1), A_wqkv, A_wo)
    x = x + _B_ref(_layernorm(x, axis=-1), B_w_gate, B_w_up, B_w_down)
    x = x + _A_ref(_layernorm(x, axis=-1), A_wqkv, A_wo)
    x = x + _B_ref(_layernorm(x, axis=-1), B_w_gate, B_w_up, B_w_down)
    return x
```

```python
import sys; sys.path.insert(0,'dev'); sys.path.insert(0,'gen')
from h import *
from lay import *
from fw import *
import refmod
inp = refmod.make_inputs(0)
r = refmod.run(inp)
R = Runner(sys.argv[1] if len(sys.argv)>1 else 'exp/k3.s', inp)
x1 = r['x1_0'][0]
R.put_ws(WS_X1B, to_blk(t2np(x1)))
R.put_ws(WS_STATS, stats_of(x1.float().numpy()))
R.launch()
hb = R.get_ws(WS_HB, np.uint16, 2048*4608)
h = np2t(from_blk(hb, 2048, 4608))
cmp('h', h, r['h0'][0])
d = (h.float() - r['h0'][0].float()).abs()
print('frac exact', (d == 0).float().mean().item())
R.launch(extra=3)
print('time cold', R.time(20, True), 'warm', R.time(20, False))
```

```python
class Asm:
    def __init__(self):
        self.lines = []
        self.vm = []
        self.lg = []
    def __call__(self, s):
        self.lines.append('    ' + s)
    def label(self, s):
        self.lines.append(s + ':')
    def comment(self, s):
        self.lines.append('    ; ' + s)
    def vmem(self, s, tag):
        self(s); self.vm.append(tag)
    def lds(self, s, tag):
        self(s); self.lg.append(tag)
    def wait_vm(self, tags):
        if isinstance(tags, str): tags = [tags]
        last = -1
        for i, t in enumerate(self.vm):
            if t in tags: last = i
        if last < 0: return
        n = len(self.vm) - 1 - last
        n = min(n, 63)
        self(f's_waitcnt vmcnt({n})')
        self.vm = self.vm[len(self.vm) - n:] if n > 0 else []
    def wait_lg(self, tags):
        if isinstance(tags, str): tags = [tags]
        last = -1
        for i, t in enumerate(self.lg):
            if t in tags: last = i
        if last < 0: return
        n = len(self.lg) - 1 - last
        n = min(n, 15)
        self(f's_waitcnt lgkmcnt({n})')
        self.lg = self.lg[len(self.lg) - n:] if n > 0 else []
    def wait_all(self):
        self('s_waitcnt vmcnt(0) lgkmcnt(0)'); self.vm = []; self.lg = []
    def wait_lg_all(self):
        if self.lg:
            self('s_waitcnt lgkmcnt(0)'); self.lg = []
    def wait_vm_all(self):
        if self.vm:
            self('s_waitcnt vmcnt(0)'); self.vm = []
    def text(self):
        return '\n'.join(self.lines) + '\n'

def kernel_header(name):
    return f'''.globl {name}
.p2align 8
.type {name},@function
{name}:
'''

def kernel_desc(name, nvgpr, nsgpr, accum):
    return f'''.p2align 6
.amdhsa_kernel {name}
  .amdhsa_next_free_vgpr {nvgpr}
  .amdhsa_next_free_sgpr {nsgpr}
  .amdhsa_accum_offset {accum}
  .amdhsa_group_segment_fixed_size 0
  .amdhsa_kernarg_size 80
  .amdhsa_user_sgpr_count 2
  .amdhsa_user_sgpr_kernarg_segment_ptr 1
  .amdhsa_system_sgpr_workgroup_id_x 1
.end_amdhsa_kernel
'''

def srd(a, d, base, nbytes):
    a(f's_mov_b32 s{d}, s{base}')
    a(f's_and_b32 s{d+1}, s{base+1}, 0xffff')
    a(f's_mov_b32 s{d+2}, {nbytes}')
    a(f's_mov_b32 s{d+3}, 0x00020000')

WS_X1B   = 0x0000000
WS_STATS = 0x0240000
WS_OB    = 0x0280000
WS_X2    = 0x0500000
WS_HB    = 0x0800000
WS_BYTES = 268435456
WS_STATS2 = 0x0258000
```

```python
from fw import *
from k3 import bf16r

RING = 92160
STG = 15360
WROW = 480
QROW = 1056
OT = 92160
OROW = 160
K1_LDS = RING + 4 * STG

def dpp_red8(a, v):
    a('s_nop 1')
    a(f'v_add_f32_dpp v{v}, v{v}, v{v} quad_perm:[1,0,3,2] row_mask:0xf bank_mask:0xf')
    a('s_nop 1')
    a(f'v_add_f32_dpp v{v}, v{v}, v{v} quad_perm:[2,3,0,1] row_mask:0xf bank_mask:0xf')
    a('s_nop 1')
    a(f'v_add_f32_dpp v{v}, v{v}, v{v} row_half_mirror row_mask:0xf bank_mask:0xf')

def gen_k1(name, layer):
    a = Asm()
    a('s_cmp_ge_u32 s2, 256')
    a(f's_cbranch_scc1 {name}_end')
    a('s_load_dwordx2 s[4:5], s[0:1], 8')
    a('s_load_dwordx2 s[8:9], s[0:1], 72')
    if layer == 0:
        a('s_load_dwordx2 s[6:7], s[0:1], 0')
    a('v_lshrrev_b32 v1, 6, v0')
    a('v_mov_b32 v2, v0')
    a('v_and_b32 v0, 63, v0')
    a('v_readfirstlane_b32 s20, v1')
    a('s_and_b32 s21, s2, 7')
    a('s_lshr_b32 s22, s2, 3')
    DOFF = 8
    a('s_mul_i32 s31, s21, 144')
    a('s_mov_b32 s32, 0x8889')
    for n in range(4):
        a(f's_add_u32 s30, s20, {4*n}')
        a('s_min_u32 s30, s30, 14')
        a(f's_lshl_b32 s{40+n}, s30, 10')
        a(f's_add_u32 s{40+n}, s{40+n}, {RING}')
        a('s_lshl_b32 s30, s30, 6')
        a('v_add_u32 v3, s30, v0')
        a('v_mul_lo_u32 v4, v3, s32')
        a('v_lshrrev_b32 v4, 20, v4')
        a('v_mul_u32_u24 v5, 30, v4')
        a('v_sub_u32 v5, v3, v5')
        a('v_min_u32 v5, 26, v5')
        a('v_mul_u32_u24 v6, 57, v5')
        a('v_lshrrev_b32 v6, 9, v6')
        a('v_mul_u32_u24 v7, 9, v6')
        a('v_sub_u32 v5, v5, v7')
        a('v_mul_u32_u24 v4, 3456, v4')
        a('v_mul_u32_u24 v6, 1152, v6')
        a('v_lshlrev_b32 v5, 4, v5')
        a('v_add3_u32 v4, v4, v6, v5')
        a(f'v_add_u32 v{DOFF+n}, s31, v4')
    XA = 12
    a('v_lshrrev_b32 v3, 3, v0')
    a('s_lshl_b32 s30, s20, 3')
    a('s_lshl_b32 s31, s22, 6')
    a('s_add_u32 s30, s30, s31')
    a('s_sub_u32 s30, s30, 16')
    a('v_add_u32 v3, s30, v3')
    a('v_and_b32 v4, 7, v0')
    a('v_lshlrev_b32 v4, 4, v4')
    for rd in range(3):
        a(f'v_add_u32 v5, {32*rd}, v3')
        a('v_max_i32 v5, 0, v5')
        a('v_min_i32 v5, 2047, v5')
        a(f'v_mov_b32 v{XA+3+rd}, v5')
        a('v_mul_u32_u24 v5, 1152, v5')
        a(f'v_add_u32 v{XA+rd}, v5, v4')
    a('s_waitcnt lgkmcnt(0)')
    srd(a, 12, 4, 1990656)
    srd(a, 16, 8, WS_BYTES)
    if layer == 0:
        srd(a, 36, 6, 2359296)
    xs = 's[36:39]' if layer == 0 else 's[16:19]'
    a(f's_mov_b32 s33, {0 if layer == 0 else WS_X2}')
    def dma_ops(ks):
        ops = []
        for n in range(4):
            ops.append(('dma', ks, n))
        return ops
    def dma(ks, n):
        a(f's_add_u32 m0, s{40+n}, {(ks % 4)*STG}')
        a(f's_mov_b32 s25, {ks*32*3456}')
        a.vmem(f'buffer_load_dwordx4 v{DOFF+n}, s[12:15], s25 offen lds', f'd{ks}')
    RAWX = 148
    STV = 20
    if layer == 1:
        a(f's_mov_b32 s30, {WS_STATS2}')
        for rd in range(3):
            a(f'v_mul_u32_u24 v5, 48, v{XA+3+rd}')
            for j in range(3):
                r = STV + rd * 12 + j * 4
                a.vmem(f'buffer_load_dwordx4 v[{r}:{r+3}], v5, s[16:19], s30 offen offset:{16*j}', f'st{rd}')
    for rd in range(3):
        for i in range(9):
            r = RAWX + rd * 36 + i * 4
            a.vmem(f'buffer_load_dwordx4 v[{r}:{r+3}], v{XA+rd}, {xs}, s33 offen offset:{128*i}', f'x{rd}')
        if rd == 0:
            for n in range(4): dma(0, n)
    for ks in range(1, 3):
        for n in range(4): dma(ks, n)
    WA = 18
    a('v_lshrrev_b32 v3, 3, v0')
    a('s_lshl_b32 s30, s20, 3')
    a('v_add_u32 v3, s30, v3')
    a('v_lshrrev_b32 v4, 4, v3')
    a('v_mul_u32_u24 v4, 18432, v4')
    a('v_and_b32 v5, 15, v3')
    a('v_lshlrev_b32 v5, 4, v5')
    a('v_add_u32 v4, v4, v5')
    a('v_bfe_u32 v5, v0, 2, 1')
    a('v_lshlrev_b32 v5, 10, v5')
    a('v_add_u32 v4, v4, v5')
    a('v_and_b32 v5, 1, v0')
    a('v_lshlrev_b32 v5, 9, v5')
    a('v_add_u32 v4, v4, v5')
    a('v_bfe_u32 v5, v0, 1, 1')
    a('v_lshlrev_b32 v5, 3, v5')
    a(f'v_add_u32 v{WA}, v4, v5')
    U = 60
    a('s_mov_b32 s34, 0xffff0000')
    a('s_mov_b32 s35, 0x3ae38e39')
    for rd in range(3):
        if rd == 2:
            a('s_cmp_ge_u32 s20, 2')
            a(f's_cbranch_scc1 {name}_lnskip')
        if layer == 1:
            a.wait_vm(f'st{rd}')
            b = STV + rd * 12
            a(f'v_add_f32 v3, v{b}, v{b+2}')
            a(f'v_add_f32 v4, v{b+4}, v{b+6}')
            a(f'v_add_f32 v5, v{b+8}, v{b+10}')
            a('v_add_f32 v3, v3, v4')
            a('v_add_f32 v3, v3, v5')
            a('v_mul_f32 v3, s35, v3')
            a(f'v_add_f32 v4, v{b+1}, v{b+3}')
            a(f'v_add_f32 v5, v{b+5}, v{b+7}')
            a(f'v_add_f32 v6, v{b+9}, v{b+11}')
            a('v_add_f32 v4, v4, v5')
            a('v_add_f32 v4, v4, v6')
            a('s_mov_b32 s31, 0x3c2aaaab')
            a('v_mov_b32 v6, 0')
            for i in range(6):
                a(f'v_fma_f32 v5, v{b+2*i}, s31, -v3')
                a('v_fma_f32 v6, v5, v5, v6')
            a('s_mov_b32 s31, 0x42c00000')
            a('v_fma_f32 v4, v6, s31, v4')
            a('v_mul_f32 v4, s35, v4')
        a.wait_vm(f'x{rd}')
        for i in range(36):
            r = RAWX + rd * 36 + i
            a(f'v_lshlrev_b32 v{U+2*i}, 16, v{r}')
            a(f'v_and_b32 v{U+2*i+1}, s34, v{r}')
        if layer == 0:
            a(f'v_add_f32 v3, v{U}, v{U+1}')
            a(f'v_add_f32 v4, v{U+2}, v{U+3}')
            for i in range(4, 72, 2):
                a(f'v_add_f32 v3, v3, v{U+i}')
                a(f'v_add_f32 v4, v4, v{U+i+1}')
            a('v_add_f32 v3, v3, v4')
            dpp_red8(a, 3)
            a('v_mul_f32 v3, s35, v3')
            a('v_mov_b32 v4, 0')
            a('v_mov_b32 v6, 0')
            for i in range(0, 72, 2):
                a(f'v_sub_f32 v5, v{U+i}, v3')
                a(f'v_sub_f32 v7, v{U+i+1}, v3')
                a('v_fma_f32 v4, v5, v5, v4')
                a('v_fma_f32 v6, v7, v7, v6')
            a('v_add_f32 v4, v4, v6')
            dpp_red8(a, 4)
            a('v_mul_f32 v4, s35, v4')
        bf16r(a, 3, 3)
        bf16r(a, 4, 4)
        a('v_add_f32 v4, 0x3727c5ac, v4')
        bf16r(a, 4, 4)
        a('v_sqrt_f32 v4, v4')
        a('s_nop 0')
        bf16r(a, 4, 4)
        a('v_rcp_f32 v4, v4')
        a('s_nop 0')
        a('v_mul_f32 v3, v3, v4')
        a('v_sub_f32 v3, 0, v3')
        for i in range(9):
            for e in range(8):
                a(f'v_fma_f32 v{U+8*i+e}, v{U+8*i+e}, v4, v3')
            r = RAWX + rd * 36 + i * 4
            for e in range(4):
                a(f'v_cvt_pk_bf16_f32 v{r+e}, v{U+8*i+2*e}, v{U+8*i+2*e+1}')
            off = 2 * 18432 * rd + 2048 * i
            if off + 256 > 65535 - 8:
                pass
            a.lds(f'ds_write_b64 v{WA if rd < 1 else 19}, v[{r}:{r+1}] offset:{off - (0 if rd < 1 else 36864*rd)}', 'xw')
            a.lds(f'ds_write_b64 v{WA if rd < 1 else 19}, v[{r+2}:{r+3}] offset:{off + 256 - (0 if rd < 1 else 36864*rd)}', 'xw')
        if rd < 2:
            a(f'v_add_u32 v19, {36864*(rd+1)}, v{WA}')
    a.label(f'{name}_lnskip')
    a('s_waitcnt lgkmcnt(0)'); a.lg = []
    TB = 19
    a('v_lshrrev_b32 v3, 4, v0')
    a('v_lshlrev_b32 v3, 2, v3')
    a('v_bfe_u32 v4, v0, 2, 2')
    a('v_add_u32 v3, v3, v4')
    a(f'v_mul_u32_u24 v3, {WROW}, v3')
    a('v_and_b32 v4, 3, v0')
    a('v_lshlrev_b32 v4, 3, v4')
    a('v_add_u32 v3, v3, v4')
    a('s_lshl_b32 s30, s20, 5')
    a(f's_add_u32 s30, s30, {RING}')
    a(f'v_add_u32 v{TB}, s30, v3')
    a('s_add_u32 s30, s20, 12')
    a('s_min_u32 s30, s30, 13')
    a('s_lshl_b32 s30, s30, 5')
    a(f's_add_u32 s30, s30, {RING}')
    a(f'v_add_u32 v{TB+1}, s30, v3')
    a(f'v_lshlrev_b32 v{TB+2}, 4, v0')
    a(f'v_add_u32 v{TB+3}, 55296, v{TB+2}')
    XF = 96; WFR = 136; ACC = 168
    def rd_x(ks, m5):
        r = XF + (ks % 2) * 20 + m5 * 4
        base = TB + 2 if m5 < 3 else TB + 3
        off = (m5 * 18 + ks) * 1024 - (0 if m5 < 3 else 55296)
        a.lds(f'ds_read_b128 v[{r}:{r+3}], v{base} offset:{off}', f'f{ks}')
    def rd_w(ks, ti, h):
        r = WFR + (ks % 2) * 16 + ti * 4 + h * 2
        base = TB if ti < 3 else TB + 1
        off = (ks % 4) * STG + h * 16 * WROW + (128 * ti if ti < 3 else 0)
        a.lds(f'ds_read_b64_tr_b16 v[{r}:{r+1}], v{base} offset:{off}', f'f{ks}')
    a.wait_vm('d0')
    a('s_barrier')
    for m5 in range(5): rd_x(0, m5)
    for ti in range(4):
        for h in range(2): rd_w(0, ti, h)
    NK = 18
    for ks in range(NK):
        a.comment(f'--- kstep {ks}')
        fills = []
        if ks + 1 < NK:
            for m5 in range(5): fills.append(('x', ks + 1, m5))
            for ti in range(4):
                for h in range(2): fills.append(('w', ks + 1, ti, h))
        if ks + 3 < NK:
            fills += dma_ops(ks + 3)
        a.wait_lg(f'f{ks}')
        if ks + 1 < NK:
            a.wait_vm(f'd{ks+1}')
            a('s_barrier')
        g = 0
        for ti in range(4):
            for m5 in range(5):
                c = ACC + (ti * 5 + m5) * 4
                w = WFR + (ks % 2) * 16 + ti * 4
                x = XF + (ks % 2) * 20 + m5 * 4
                a(f'v_mfma_f32_16x16x32_bf16 v[{c}:{c+3}], v[{w}:{w+3}], v[{x}:{x+3}], ' + ('0' if ks == 0 else f'v[{c}:{c+3}]'))
                if g < len(fills):
                    f = fills[g]
                    if f[0] == 'x': rd_x(*f[1:])
                    elif f[0] == 'w': rd_w(*f[1:])
                    else: dma(*f[1:])
                g += 1
    a('s_barrier')
    a('v_and_b32 v3, 15, v0')
    a(f'v_mul_u32_u24 v3, {QROW}, v3')
    a('v_lshrrev_b32 v4, 4, v0')
    a('v_lshlrev_b32 v4, 4, v4')
    a('v_add_u32 v3, v3, v4')
    a('s_lshl_b32 s30, s20, 6')
    a('v_add_u32 v3, s30, v3')
    a(f'v_add_u32 v4, {48*QROW}, v3')
    for ti in range(4):
        if ti == 3:
            a('s_cmp_ge_u32 s20, 2')
            a(f's_cbranch_scc1 {name}_qskip')
            a('s_mov_b64 s[44:45], exec')
            a('s_cmp_eq_u32 s20, 1')
            a('s_cselect_b32 s46, 0, -1')
            a('s_mov_b32 exec_hi, s46')
        for m5 in range(5):
            c = ACC + (ti * 5 + m5) * 4
            a(f'v_cvt_pk_bf16_f32 v5, v{c}, v{c+1}')
            a(f'v_cvt_pk_bf16_f32 v6, v{c+2}, v{c+3}')
            a(f'v_lshlrev_b32 v{c}, 16, v5')
            a(f'v_and_b32 v{c+1}, s34, v5')
            a(f'v_lshlrev_b32 v{c+2}, 16, v6')
            a(f'v_and_b32 v{c+3}, s34, v6')
            base = 3 if m5 < 3 else 4
            a.lds(f'ds_write_b128 v{base}, v[{c}:{c+3}] offset:{(m5 % 3)*16*QROW + ti*256}', 'qw')
        if ti == 3:
            a('s_mov_b64 exec, s[44:45]')
    a.label(f'{name}_qskip')
    a('s_waitcnt lgkmcnt(0)'); a.lg = []
    a('s_barrier')
    a('v_lshrrev_b32 v3, 2, v2')
    a('v_and_b32 v4, 3, v2')
    a(f'v_mul_u32_u24 v5, {QROW}, v3')
    a('v_mul_u32_u24 v6, 72, v4')
    a('v_add_u32 v5, v5, v6')
    a('s_lshl_b32 s30, s22, 6')
    a('v_add_u32 v7, s30, v3')
    Q = 20; KV = 40; L = 112; O = 120
    for d in range(9):
        a.lds(f'ds_read_b64 v[{Q+2*d}:{Q+2*d+1}], v5 offset:{16*QROW + 8*d}', 'q')
    def rd_kv(w, mat, buf):
        for d in range(9):
            r = KV + buf * 18 + 2 * d
            a.lds(f'ds_read_b64 v[{r}:{r+1}], v5 offset:{(16-2*w)*QROW + 288*(1+mat) + 8*d}', f'kv{mat}{w}')
    rd_kv(0, 0, 0)
    a('s_mov_b32 s31, 0x3e715bef')
    for w in range(8):
        if w + 1 < 8: rd_kv(w + 1, 0, (w + 1) % 2)
        else: rd_kv(0, 1, 0)
        a.wait_lg(['q', f'kv0{w}'])
        b = KV + (w % 2) * 18
        a(f'v_mul_f32 v{L+w}, v{Q}, v{b}')
        a(f'v_mul_f32 v8, v{Q+1}, v{b+1}')
        for d in range(2, 18, 2):
            a(f'v_fma_f32 v{L+w}, v{Q+d}, v{b+d}, v{L+w}')
            a(f'v_fma_f32 v8, v{Q+d+1}, v{b+d+1}, v8')
        a(f'v_add_f32 v{L+w}, v{L+w}, v8')
        bf16r(a, L + w, L + w)
        a(f'v_mul_f32 v{L+w}, s31, v{L+w}')
        bf16r(a, L + w, L + w)
        if w > 0:
            a(f'v_cmp_le_u32 vcc, {2*w}, v7')
            a('v_mov_b32 v8, 0xce6e6b28')
            a('s_nop 0')
            a(f'v_cndmask_b32 v{L+w}, v8, v{L+w}, vcc')
    a(f'v_max_f32 v8, v{L}, v{L+1}')
    for w in range(2, 8): a(f'v_max_f32 v8, v8, v{L+w}')
    a('s_mov_b32 s31, 0x3fb8aa3b')
    for w in range(8):
        a(f'v_sub_f32 v{L+w}, v{L+w}, v8')
        a(f'v_mul_f32 v{L+w}, s31, v{L+w}')
        a(f'v_exp_f32 v{L+w}, v{L+w}')
    a('s_nop 0')
    a(f'v_add_f32 v8, v{L}, v{L+1}')
    for w in range(2, 8): a(f'v_add_f32 v8, v8, v{L+w}')
    a('v_rcp_f32 v8, v8')
    a('s_nop 0')
    for w in range(8):
        a(f'v_mul_f32 v{L+w}, v{L+w}, v8')
        bf16r(a, L + w, L + w)
    for w in range(8):
        if w + 1 < 8: rd_kv(w + 1, 1, (w + 1) % 2)
        a.wait_lg(f'kv1{w}')
        b = KV + (w % 2) * 18
        for d in range(18):
            if w == 0: a(f'v_mul_f32 v{O+d}, v{L}, v{b+d}')
            else: a(f'v_fma_f32 v{O+d}, v{L+w}, v{b+d}, v{O+d}')
    for d in range(9): a(f'v_cvt_pk_bf16_f32 v{Q+d}, v{O+2*d}, v{O+2*d+1}')
    a(f'v_mul_u32_u24 v5, {OROW}, v3')
    a('v_mul_u32_u24 v6, 36, v4')
    a(f's_mov_b32 s30, {OT}')
    a('v_add3_u32 v5, v5, v6, s30')
    for d in range(9): a.lds(f'ds_write_b32 v5, v{Q+d} offset:{4*d}', 'ow')
    a('s_waitcnt lgkmcnt(0)'); a.lg = []
    a('s_barrier')
    a('s_mov_b32 s32, 0x1c72')
    a('s_mul_i32 s31, s21, 9')
    a(f's_mov_b32 s33, {WS_OB}')
    for j in range(3):
        a(f'v_add_u32 v3, {256*j}, v2')
        a('v_mul_lo_u32 v4, v3, s32')
        a('v_lshrrev_b32 v4, 16, v4')
        a('v_mul_u32_u24 v5, 9, v4')
        a('v_sub_u32 v5, v3, v5')
        a(f'v_mul_u32_u24 v6, {OROW}, v4')
        a('v_lshlrev_b32 v8, 4, v5')
        a('v_add3_u32 v6, v6, v8, s30')
        if j == 2:
            a('v_cmp_gt_u32 vcc, 64, v2')
            a('s_and_saveexec_b64 s[44:45], vcc')
            a(f's_cbranch_execz {name}_end')
        a.lds(f'ds_read_b128 v[{20+4*j}:{23+4*j}], v6', f'or{j}')
        a('v_add_u32 v5, s31, v5')
        a('s_lshl_b32 s35, s22, 6')
        a('v_add_u32 v4, s35, v4')
        a('v_lshrrev_b32 v6, 5, v4')
        a('v_mul_u32_u24 v6, 36, v6')
        a('v_lshrrev_b32 v8, 1, v5')
        a('v_add_u32 v6, v6, v8')
        a('v_lshlrev_b32 v6, 10, v6')
        a('v_and_b32 v8, 1, v5')
        a('v_lshlrev_b32 v8, 5, v8')
        a('v_and_b32 v4, 31, v4')
        a('v_add_u32 v8, v8, v4')
        a('v_lshlrev_b32 v8, 4, v8')
        a(f'v_add_u32 v{32+j}, v6, v8')
        a.wait_lg(f'or{j}')
        a.vmem(f'buffer_store_dwordx4 v[{20+4*j}:{23+4*j}], v{32+j}, s[16:19], s33 offen', 'st')
    a.label(f'{name}_end')
    a('s_endpgm')
    return kernel_header(name) + a.text(), kernel_desc(name, 256, 64, 256)
```

```python
from fw import *

SLOT = 37120
UOFF = 18432 + 128
K3_LDS = 4 * SLOT

def bf16r(a, d, s):
    a(f'v_cvt_pk_bf16_f32 v{d}, v{s}, v{s}')
    a(f'v_lshlrev_b32 v{d}, 16, v{d}')

def gen_k3(name, mimic=True, stamps=False):
    a = Asm()
    def stamp(i):
        if stamps:
            a(f's_memtime s[{50+2*i}:{51+2*i}]')
    RAW = 8; XN = 40; TMP = 56; ST = 64; DOFF = 68; LB = 77; XV = 81
    ACCV = 96
    WF = 128
    def acc(t, mb):
        i = t * 2 + mb
        return (f'v[{ACCV+16*i}:{ACCV+16*i+15}]', 'v', ACCV + 16 * i) if i < 10 else (f'a[{16*(i-10)}:{16*(i-10)+15}]', 'a', 16 * (i - 10))
    a('s_cmp_ge_u32 s2, 256')
    a(f's_cbranch_scc1 {name}_end')
    stamp(0)
    a('s_load_dwordx4 s[4:7], s[0:1], 32')
    a('s_load_dwordx2 s[8:9], s[0:1], 72')
    a('v_lshrrev_b32 v1, 6, v0')
    a('v_and_b32 v0, 63, v0')
    a('s_nop 0')
    a('v_readfirstlane_b32 s20, v1')
    a('s_and_b32 s21, s2, 7')
    a('s_lshl_b32 s21, s21, 2')
    a('s_lshr_b32 s22, s2, 3')
    a('s_and_b32 s22, s22, 3')
    a('s_add_u32 s21, s21, s22')
    a('s_lshr_b32 s22, s2, 5')
    a('s_lshl_b32 s29, s22, 3')
    a('s_lshl_b32 s30, s20, 1')
    a('s_add_u32 s29, s29, s30')
    a('s_mul_i32 s23, s29, 36864')
    a(f's_add_u32 s23, s23, {WS_X1B}')
    a('s_mul_i32 s28, s29, 288')
    a('s_mul_i32 s30, s21, 9')
    a('s_add_u32 s28, s28, s30')
    a('s_lshl_b32 s28, s28, 10')
    a(f's_add_u32 s28, s28, {WS_HB}')
    a('v_and_b32 v1, 31, v0')
    a('s_lshl_b32 s30, s29, 5')
    a('v_add_u32 v1, s30, v1')
    a('v_mul_u32_u24 v1, 48, v1')
    a('s_mul_i32 s30, s21, 288')
    a('s_mov_b32 s31, 0xe38f')
    a('s_mov_b32 s32, 9216')
    for j in range(9):
        a(f'v_add_u32 v2, {64*j}, v0')
        a('v_mul_lo_u32 v3, v2, s31')
        a('v_lshrrev_b32 v3, 20, v3')
        a('v_mul_u32_u24 v4, 18, v3')
        a('v_sub_u32 v4, v2, v4')
        a('v_mul_lo_u32 v3, v3, s32')
        a('v_lshlrev_b32 v4, 4, v4')
        a(f'v_add3_u32 v{DOFF+j}, v3, v4, s30')
    a('s_lshr_b32 s30, s20, 1')
    a(f's_mul_i32 s27, s30, {UOFF}')
    a('s_and_b32 s30, s20, 1')
    a('s_mul_i32 s31, s30, 9216')
    a('s_add_u32 s27, s27, s31')
    a(f's_mul_i32 s26, s30, {32*9216}')
    a(f'v_lshlrev_b32 v{XV}, 4, v0')
    a('s_waitcnt lgkmcnt(0)')
    a('s_cmp_ge_u32 s20, 2')
    a('s_cselect_b32 s12, s6, s4')
    a('s_cselect_b32 s13, s7, s5')
    a('s_and_b32 s13, s13, 0xffff')
    a('s_mov_b32 s14, 5308416')
    a('s_mov_b32 s15, 0x00020000')
    srd(a, 16, 8, WS_BYTES)

    def dma(ss, j):
        slot = ss % 4
        a(f's_add_u32 m0, s27, {slot*SLOT + j*1024}')
        if j == 0:
            a(f's_add_u32 s33, s26, {ss*64*9216}')
        else:
            a('s_nop 0')
        a.vmem(f'buffer_load_dwordx4 v{DOFF+j}, s[12:15], s33 offen lds', f'dma{ss}')
    def xload(s, mb):
        r = RAW + (s % 4) * 8 + mb * 4
        a(f's_add_u32 s24, s23, {s*1024 + mb*36864}')
        a.vmem(f'buffer_load_dwordx4 v[{r}:{r+3}], v{XV}, s[16:19], s24 offen', f'x{s}')
    def norm_ops(s):
        ops = []
        for mb in range(2):
            r = RAW + (s % 4) * 8 + mb * 4
            d = XN + (s % 2) * 8 + mb * 4
            for i in range(4):
                t0 = TMP + (i % 4) * 2; t1 = t0 + 1
                ops.append(f'v_lshlrev_b32 v{t0}, 16, v{r+i}')
                ops.append(f'v_and_b32 v{t1}, 0xffff0000, v{r+i}')
                ops.append(f'v_fma_f32 v{t0}, v{t0}, v{ST+2*mb}, v{ST+2*mb+1}')
                ops.append(f'v_fma_f32 v{t1}, v{t1}, v{ST+2*mb}, v{ST+2*mb+1}')
                ops.append(f'v_cvt_pk_bf16_f32 v{d+i}, v{t0}, v{t1}')
        return ops
    def trread(s, t, h):
        ss = s // 4; ksl = s % 4
        w = WF + (s % 2) * 36 + t * 4 + h * 2
        off = ksl * 4608 + h * 1152 + t * 32
        a.lds(f'ds_read_b64_tr_b16 a[{w}:{w+1}], v{LB + ss % 4} offset:{off}', f'w{s}')

    a(f's_mov_b32 s30, {WS_STATS}')
    for mb in range(2):
        for j in range(3):
            r = ACCV + mb * 12 + j * 4
            a.vmem(f'buffer_load_dwordx4 v[{r}:{r+3}], v1, s[16:19], s30 offen offset:{mb*1536 + j*16}', 'stats')
    for mb in range(2): xload(0, mb)
    for j in range(9): dma(0, j)
    for s_ in range(1, 4):
        for mb in range(2): xload(s_, mb)
    for ss in range(1, 3):
        for j in range(9): dma(ss, j)
    a('v_bfe_u32 v2, v0, 4, 1')
    a(f's_mov_b32 s30, {UOFF}')
    a('v_mul_lo_u32 v2, v2, s30')
    a('v_lshrrev_b32 v3, 5, v0')
    a('v_lshlrev_b32 v3, 3, v3')
    a('v_bfe_u32 v4, v0, 2, 2')
    a('v_add_u32 v3, v3, v4')
    a('v_mul_u32_u24 v3, 288, v3')
    a('v_add_u32 v2, v2, v3')
    a('v_and_b32 v3, 1, v0')
    a('v_lshlrev_b32 v3, 4, v3')
    a('v_add_u32 v2, v2, v3')
    a('v_bfe_u32 v3, v0, 1, 1')
    a('v_lshlrev_b32 v3, 3, v3')
    a(f'v_add_u32 v{LB}, v2, v3')
    for s in range(1, 4):
        a(f'v_add_u32 v{LB+s}, {s*SLOT}, v{LB}')
    a.wait_vm('stats')
    for mb in range(2):
        b = ACCV + mb * 12
        a(f'v_add_f32 v1, v{b}, v{b+2}')
        a(f'v_add_f32 v2, v{b+4}, v{b+6}')
        a(f'v_add_f32 v3, v{b+8}, v{b+10}')
        a('v_add_f32 v1, v1, v2')
        a('v_add_f32 v1, v1, v3')
        a('s_mov_b32 s30, 0x3ae38e39')
        a('v_mul_f32 v1, s30, v1')
        a(f'v_add_f32 v2, v{b+1}, v{b+3}')
        a(f'v_add_f32 v3, v{b+5}, v{b+7}')
        a(f'v_add_f32 v4, v{b+9}, v{b+11}')
        a('v_add_f32 v2, v2, v3')
        a('v_add_f32 v2, v2, v4')
        a('s_mov_b32 s31, 0x3c2aaaab')
        a('v_mov_b32 v4, 0')
        for i in range(6):
            a(f'v_fma_f32 v3, v{b+2*i}, s31, -v1')
            a('v_fma_f32 v4, v3, v3, v4')
        a('s_mov_b32 s31, 0x42c00000')
        a('v_fma_f32 v2, v4, s31, v2')
        a('v_mul_f32 v2, s30, v2')
        bf16r(a, 1, 1)
        bf16r(a, 2, 2)
        a('v_add_f32 v2, 0x3727c5ac, v2')
        bf16r(a, 2, 2)
        a('v_sqrt_f32 v2, v2')
        a('s_nop 0')
        bf16r(a, 2, 2)
        a(f'v_rcp_f32 v{ST+2*mb}, v2')
        a('s_nop 0')
        a(f'v_mul_f32 v{ST+2*mb+1}, v1, v{ST+2*mb}')
        a(f'v_sub_f32 v{ST+2*mb+1}, 0, v{ST+2*mb+1}')
    a.wait_vm('x0')
    for op in norm_ops(0): a(op)
    a.wait_vm('dma0')
    a('s_barrier')
    for t in range(9):
        for h in range(2): trread(0, t, h)
    stamp(1)
    NS = 36
    for s in range(NS):
        fill = [[] for _ in range(18)]
        nxt = s + 1 < NS
        pre = []
        if nxt and (s + 1) % 4 == 0:
            ss1 = (s + 1) // 4
            pre.append(('waitvm', f'dma{ss1}'))
            pre.append(('bar',))
        if nxt:
            pre.append(('waitvm', f'x{s+1}'))
            for t in range(9):
                fill[t].append(('tr', s + 1, t, 0)); fill[t].append(('tr', s + 1, t, 1))
            ops = norm_ops(s + 1)
            for i, op in enumerate(ops):
                fill[(i * 18) // len(ops)].append(('op', op))
        if s + 4 < NS:
            fill[9].append(('x', s + 4, 0)); fill[10].append(('x', s + 4, 1))
        for ds in range(3):
            s0 = s - ds
            if s0 >= 3 and (s0 + 1) % 4 == 0:
                ssn = (s0 + 1) // 4 + 2
                if ssn < 9:
                    for jj in range(3):
                        fill[12 + 2 * jj].append(('dma', ssn, ds * 3 + jj))
        a.wait_lg(f'w{s}')
        for p in pre:
            if p[0] == 'waitvm': a.wait_vm(p[1])
            else: a('s_barrier')
        g = 0
        for t in range(9):
            for mb in range(2):
                c = acc(t, mb)[0]
                w = WF + (s % 2) * 36 + t * 4
                x = XN + (s % 2) * 8 + mb * 4
                a(f'v_mfma_f32_32x32x16_bf16 {c}, a[{w}:{w+3}], v[{x}:{x+3}], ' + ('0' if s == 0 else c))
                for f in fill[g]:
                    if f[0] == 'tr': trread(*f[1:])
                    elif f[0] == 'op': a(f[1])
                    elif f[0] == 'x': xload(*f[1:])
                    elif f[0] == 'dma': dma(*f[1:])
                g += 1
    stamp(2)
    a('s_mov_b32 s30, 0xbfb8aa3b')
    a('s_mov_b32 s31, 0xbfb8aa3b')
    a('s_mov_b32 s32, 0xffff0000')
    a('s_mov_b32 s34, 1.0')
    a('s_mov_b32 s35, 1.0')
    a('s_nop 8')
    E = 8
    G = E + 16; U = E + 24; T = E + 32; P = E + 40
    for t in range(9):
        for mb in range(2):
            _, kind, base = acc(t, mb)
            if kind == 'a':
                for i in range(16): a(f'v_accvgpr_read_b32 v{E+i}, a{base+i}')
                src = E
            else:
                src = base
            g = lambda i: src + i
            u = lambda i: src + 8 + i
            if mimic:
                for i in range(0, 8, 2):
                    a(f'v_cvt_pk_bf16_f32 v{T+i}, v{g(i)}, v{g(i+1)}')
                    a(f'v_cvt_pk_bf16_f32 v{T+i+1}, v{u(i)}, v{u(i+1)}')
                for i in range(0, 8, 2):
                    a(f'v_lshlrev_b32 v{G+i}, 16, v{T+i}')
                    a(f'v_and_b32 v{G+i+1}, s32, v{T+i}')
                    a(f'v_lshlrev_b32 v{U+i}, 16, v{T+i+1}')
                    a(f'v_and_b32 v{U+i+1}, s32, v{T+i+1}')
                gg = lambda i: G + i; uu = lambda i: U + i
            else:
                gg = g; uu = u
            for i in range(0, 8, 2): a(f'v_pk_mul_f32 v[{T+i}:{T+i+1}], v[{gg(i)}:{gg(i)+1}], s[30:31]')
            for i in range(8): a(f'v_exp_f32 v{T+i}, v{T+i}')
            for i in range(0, 8, 2): a(f'v_pk_add_f32 v[{T+i}:{T+i+1}], v[{T+i}:{T+i+1}], s[34:35]')
            for i in range(8): a(f'v_rcp_f32 v{T+i}, v{T+i}')
            for i in range(0, 8, 2): a(f'v_pk_mul_f32 v[{T+i}:{T+i+1}], v[{gg(i)}:{gg(i)+1}], v[{T+i}:{T+i+1}]')
            if mimic:
                for i in range(0, 8, 2): a(f'v_cvt_pk_bf16_f32 v{P+i//2}, v{T+i}, v{T+i+1}')
                for i in range(0, 8, 2):
                    a(f'v_lshlrev_b32 v{T+i}, 16, v{P+i//2}')
                    a(f'v_and_b32 v{T+i+1}, s32, v{P+i//2}')
            for i in range(0, 8, 2): a(f'v_pk_mul_f32 v[{T+i}:{T+i+1}], v[{T+i}:{T+i+1}], v[{uu(i)}:{uu(i)+1}]')
            PO = P + 4
            for i in range(0, 8, 2): a(f'v_cvt_pk_bf16_f32 v{PO+i//2}, v{T+i}, v{T+i+1}')
            a(f's_add_u32 s24, s28, {t*1024 + mb*288*1024}')
            a.vmem(f'buffer_store_dwordx4 v[{PO}:{PO+3}], v{XV}, s[16:19], s24 offen', 'st')
    if stamps:
        stamp(3)
        a('s_waitcnt vmcnt(0)')
        stamp(4)
        a('s_waitcnt lgkmcnt(0)')
        a('s_lshl_b32 s30, s2, 2')
        a('s_add_u32 s30, s30, s20')
        a('s_lshl_b32 s30, s30, 6')
        a('s_add_u32 s30, s30, 0x4000000')
        a('v_mov_b32 v1, 0')
        for i in range(5):
            a(f'v_mov_b32 v2, s{50+2*i}')
            a(f'buffer_store_dword v2, v1, s[16:19], s30 offen offset:{4*i}')
    a.label(f'{name}_end')
    a('s_endpgm')
    return kernel_header(name) + a.text(), kernel_desc(name, 456, 64, 256)
```

```python
from fw import *

RD = 8
SLAB = 3072
RSTRIDE = 400
K4_LDS = 4 * 64 * RSTRIDE

def gen_k4(name, mode, layer, stamps=False):
    a = Asm()
    KB = 36 if mode == 'wo' else 288
    NSW = KB // 4
    A_OFF = WS_OB if mode == 'wo' else WS_HB
    HR = 32; WF = 96; ACC = 128; DOFF = 8; LBV = 11; XV = 12
    PD = RD - 1
    a('s_cmp_ge_u32 s2, 192')
    a(f's_cbranch_scc1 {name}_end')
    a(f's_load_dwordx2 s[4:5], s[0:1], {16 if mode == "wo" else 48}')
    a('s_load_dwordx2 s[8:9], s[0:1], 72')
    if mode == 'wo' and layer == 0:
        a('s_load_dwordx2 s[6:7], s[0:1], 0')
    if mode == 'down' and layer == 1:
        a('s_load_dwordx2 s[6:7], s[0:1], 56')
    a('v_lshrrev_b32 v1, 6, v0')
    a('v_mov_b32 v13, v0')
    a('v_and_b32 v0, 63, v0')
    a('v_readfirstlane_b32 s20, v1')
    a('s_lshr_b32 s21, s2, 3')
    a('s_mul_i32 s22, s21, 43')
    a('s_lshr_b32 s22, s22, 8')
    a('s_mul_i32 s23, s22, 6')
    a('s_sub_u32 s21, s21, s23')
    a('s_and_b32 s23, s2, 7')
    a('s_lshl_b32 s23, s23, 2')
    a('s_add_u32 s22, s22, s23')
    a(f's_mul_i32 s23, s22, {2*KB*1024}')
    a('s_lshl_b32 s24, s20, 10')
    a('s_add_u32 s23, s23, s24')
    a(f's_add_u32 s23, s23, {A_OFF}')
    a(f's_mul_i32 s26, s20, {16*1152}')
    a(f's_mul_i32 s27, s20, {RD*SLAB}')
    a('s_mul_i32 s30, s21, 192')
    a('s_mov_b32 s31, 0x5556')
    for j in range(3):
        a(f'v_add_u32 v2, {64*j}, v0')
        a('v_mul_lo_u32 v3, v2, s31')
        a('v_lshrrev_b32 v3, 18, v3')
        a('v_mul_u32_u24 v4, 12, v3')
        a('v_sub_u32 v4, v2, v4')
        a('v_mul_u32_u24 v3, 1152, v3')
        a('v_lshlrev_b32 v4, 4, v4')
        a(f'v_add3_u32 v{DOFF+j}, v3, v4, s30')
    a('v_lshrrev_b32 v2, 5, v0')
    a('v_lshlrev_b32 v2, 3, v2')
    a('v_bfe_u32 v3, v0, 2, 2')
    a('v_add_u32 v2, v2, v3')
    a('v_mul_u32_u24 v2, 192, v2')
    a('v_bfe_u32 v3, v0, 4, 1')
    a('v_lshlrev_b32 v3, 5, v3')
    a('v_add_u32 v2, v2, v3')
    a('v_and_b32 v3, 3, v0')
    a('v_lshlrev_b32 v3, 3, v3')
    a(f'v_add3_u32 v{LBV}, v2, v3, s27')
    a(f'v_lshlrev_b32 v{XV}, 4, v0')
    a('s_waitcnt lgkmcnt(0)')
    srd(a, 12, 4, 663552 if mode == 'wo' else 5308416)
    srd(a, 16, 8, WS_BYTES)
    if (mode == 'wo' and layer == 0) or (mode == 'down' and layer == 1):
        srd(a, 36, 6, 2359296)

    def loads(s):
        sl = s % RD
        for mb in range(2):
            r = HR + sl * 8 + mb * 4
            a(f's_add_u32 s24, s23, {s*4096 + mb*KB*1024}')
            a.vmem(f'buffer_load_dwordx4 v[{r}:{r+3}], v{XV}, s[16:19], s24 offen', f'h{s}')
        a(f's_add_u32 s25, s26, {s*4*16*1152}')
        for j in range(3):
            a(f's_add_u32 m0, s27, {sl*SLAB + j*1024}')
            a('s_nop 0')
            a.vmem(f'buffer_load_dwordx4 v{DOFF+j}, s[12:15], s25 offen lds', f'd{s}')
    def trread(s, t, h):
        w = WF + (s % 2) * 12 + t * 4 + h * 2
        a.lds(f'ds_read_b64_tr_b16 v[{w}:{w+1}], v{LBV} offset:{(s % RD)*SLAB + h*768 + t*64}', f'w{s}')

    for s in range(min(PD, NSW)): loads(s)
    a.wait_vm('d0')
    for t in range(3):
        for h in range(2): trread(0, t, h)
    for s in range(NSW):
        a.comment(f'--- step {s}')
        a.wait_lg(f'w{s}')
        a.wait_vm([f'h{s}', f'd{s+1}'])
        g = 0
        for t in range(3):
            for mb in range(2):
                c = ACC + (t * 2 + mb) * 16
                w = WF + (s % 2) * 12 + t * 4
                x = HR + (s % RD) * 8 + mb * 4
                a(f'v_mfma_f32_32x32x16_bf16 v[{c}:{c+15}], v[{w}:{w+3}], v[{x}:{x+3}], ' + ('0' if s == 0 else f'v[{c}:{c+15}]'))
                if s + 1 < NSW and g < 3:
                    trread(s + 1, g, 0); trread(s + 1, g, 1)
                if g == 3 and s + PD < NSW:
                    loads(s + PD)
                g += 1
    a('v_lshrrev_b32 v1, 2, v13')
    a('v_and_b32 v2, 3, v13')
    a('s_lshl_b32 s30, s22, 6')
    a('v_add_u32 v3, s30, v1')
    RES = 16
    if mode == 'wo':
        a('v_mul_u32_u24 v4, 1152, v3')
        a('v_lshlrev_b32 v5, 4, v2')
        a('v_add_u32 v4, v4, v5')
        a('s_mul_i32 s30, s21, 192')
        if layer == 1: a(f's_add_u32 s30, s30, {WS_X2}')
        sr = 's[36:39]' if layer == 0 else 's[16:19]'
        for i in range(3):
            a.vmem(f'buffer_load_dwordx4 v[{RES+4*i}:{RES+4*i+3}], v4, {sr}, s30 offen offset:{64*i}', 'res')
    a('v_lshrrev_b32 v5, 5, v3')
    a('v_mul_u32_u24 v5, 36864, v5')
    a('v_lshrrev_b32 v6, 1, v2')
    a('v_lshlrev_b32 v6, 10, v6')
    a('v_add_u32 v5, v5, v6')
    a('v_and_b32 v6, 1, v2')
    a('v_lshlrev_b32 v6, 5, v6')
    a('v_and_b32 v7, 31, v3')
    a('v_add_u32 v6, v6, v7')
    a('v_lshlrev_b32 v6, 4, v6')
    a('v_add_u32 v5, v5, v6')
    a(f's_mul_i32 s31, s21, {6*1024}')
    a(f's_add_u32 s31, s31, {WS_X1B}')
    if mode == 'down':
        for i in range(2):
            a.vmem(f'buffer_load_dwordx4 v[{RES+4*i}:{RES+4*i+3}], v5, s[16:19], s31 offen offset:{2048*i}', 'res')
        a('v_add_u32 v6, 4096, v5')
        a.vmem(f'buffer_load_dwordx4 v[{RES+8}:{RES+11}], v6, s[16:19], s31 offen', 'res')
    a('s_barrier')
    a('v_and_b32 v7, 31, v0')
    a(f'v_mul_u32_u24 v7, {RSTRIDE}, v7')
    a('v_lshrrev_b32 v28, 5, v0')
    a('v_lshlrev_b32 v28, 4, v28')
    a(f's_mul_i32 s32, s20, {64*RSTRIDE}')
    a('v_add3_u32 v7, v7, v28, s32')
    a('s_nop 4')
    for t in range(3):
        for mb in range(2):
            c = ACC + (t * 2 + mb) * 16
            for q in range(4):
                a.lds(f'ds_write_b128 v7, v[{c+4*q}:{c+4*q+3}] offset:{mb*32*RSTRIDE + t*128 + q*32}', 'pw')
    a.wait_lg_all()
    a('s_barrier')
    a(f'v_mul_u32_u24 v7, {RSTRIDE}, v1')
    a('v_lshlrev_b32 v28, 5, v2')
    a('v_add_u32 v7, v7, v28')
    a(f'v_add_u32 v28, {2*64*RSTRIDE}, v7')
    PR = 32
    for w in range(4):
        for i in range(3):
            for hh in range(2):
                r = PR + (w * 3 + i) * 8 + hh * 4
                a.lds(f'ds_read_b128 v[{r}:{r+3}], v{7 if w < 2 else 28} offset:{(w%2)*64*RSTRIDE + i*128 + hh*16}', f'pr{w}')
    a('s_mov_b32 s32, 0xffff0000')
    a.wait_lg('pr1')
    for i in range(24): a(f'v_add_f32 v{PR+i}, v{PR+i}, v{PR+24+i}')
    a.wait_lg('pr3')
    for i in range(24): a(f'v_add_f32 v{PR+48+i}, v{PR+48+i}, v{PR+72+i}')
    for i in range(24): a(f'v_add_f32 v{PR+i}, v{PR+i}, v{PR+48+i}')
    a.wait_vm('res')
    O = 128
    F = 140
    for i in range(12):
        a(f'v_cvt_pk_bf16_f32 v{PR+48}, v{PR+2*i}, v{PR+2*i+1}')
        a(f'v_lshlrev_b32 v{PR+49}, 16, v{PR+48}')
        a(f'v_and_b32 v{PR+50}, s32, v{PR+48}')
        a(f'v_lshlrev_b32 v{PR+51}, 16, v{RES+i}')
        a(f'v_and_b32 v{PR+52}, s32, v{RES+i}')
        a(f'v_add_f32 v{PR+49}, v{PR+49}, v{PR+51}')
        a(f'v_add_f32 v{PR+50}, v{PR+50}, v{PR+52}')
        a(f'v_cvt_pk_bf16_f32 v{O+i}, v{PR+49}, v{PR+50}')
    if mode == 'wo':
        a.vmem(f'buffer_store_dwordx4 v[{O}:{O+3}], v5, s[16:19], s31 offen', 'st')
        a.vmem(f'buffer_store_dwordx4 v[{O+4}:{O+7}], v5, s[16:19], s31 offen offset:2048', 'st')
        a('v_add_u32 v6, 4096, v5')
        a.vmem(f'buffer_store_dwordx4 v[{O+8}:{O+11}], v6, s[16:19], s31 offen', 'st')
    else:
        a('v_mul_u32_u24 v4, 1152, v3')
        a('v_lshlrev_b32 v6, 4, v2')
        a('v_add_u32 v4, v4, v6')
        a('s_mul_i32 s30, s21, 192')
        if layer == 0: a(f's_add_u32 s30, s30, {WS_X2}')
        sr = 's[16:19]' if layer == 0 else 's[36:39]'
        for i in range(3):
            a.vmem(f'buffer_store_dwordx4 v[{O+4*i}:{O+4*i+3}], v4, {sr}, s30 offen offset:{64*i}', 'st')
    if mode == 'wo' or layer == 0:
        for i in range(12):
            a(f'v_lshlrev_b32 v{F+2*i}, 16, v{O+i}')
            a(f'v_and_b32 v{F+2*i+1}, s32, v{O+i}')
        a(f'v_add_f32 v28, v{F}, v{F+1}')
        for i in range(2, 24): a(f'v_add_f32 v28, v28, v{F+i}')
        a('s_nop 1')
        a('v_add_f32_dpp v28, v28, v28 quad_perm:[1,0,3,2] row_mask:0xf bank_mask:0xf')
        a('s_nop 1')
        a('v_add_f32_dpp v28, v28, v28 quad_perm:[2,3,0,1] row_mask:0xf bank_mask:0xf')
        a('s_mov_b32 s33, 0x3c2aaaab')
        a('v_mul_f32 v30, s33, v28')
        a('v_mov_b32 v29, 0')
        for i in range(24):
            a(f'v_sub_f32 v31, v{F+i}, v30')
            a('v_fma_f32 v29, v31, v31, v29')
        a('s_nop 1')
        a('v_add_f32_dpp v29, v29, v29 quad_perm:[1,0,3,2] row_mask:0xf bank_mask:0xf')
        a('s_nop 1')
        a('v_add_f32_dpp v29, v29, v29 quad_perm:[2,3,0,1] row_mask:0xf bank_mask:0xf')
        a('v_mul_u32_u24 v4, 48, v3')
        a('s_lshl_b32 s30, s21, 3')
        a(f's_add_u32 s30, s30, {WS_STATS if mode == "wo" else WS_STATS2}')
        a('v_cmp_eq_u32 vcc, 0, v2')
        a('s_and_saveexec_b64 s[40:41], vcc')
        a.vmem('buffer_store_dwordx2 v[28:29], v4, s[16:19], s30 offen', 'st')
        a('s_mov_b64 exec, s[40:41]')
    a.label(f'{name}_end')
    a('s_endpgm')
    return kernel_header(name) + a.text(), kernel_desc(name, 224, 48, 224)
```

```python
import sys; sys.path.insert(0,'gen')
from fw import *
from k1 import gen_k1, K1_LDS
from k3 import gen_k3, K3_LDS
from k4 import gen_k4, K4_LDS
NAME = 'interleave_layers__sliding_local_dilated__swiglu_ffn__prompt'
hdr = open(f'cdna_kernels/{NAME}.s.ref').read().split('; Override launch')[0]
def build(out):
    ks = []
    ks.append(('k1a_kernel', gen_k1('k1a_kernel', 0), 256, K1_LDS))
    ks.append(('k2a_kernel', gen_k4('k2a_kernel', 'wo', 0), 192, K4_LDS))
    ks.append(('k3_kernel', gen_k3('k3_kernel'), 256, K3_LDS))
    ks.append(('k4a_kernel', gen_k4('k4a_kernel', 'down', 0), 192, K4_LDS))
    ks.append(('k1b_kernel', gen_k1('k1b_kernel', 1), 256, K1_LDS))
    ks.append(('k2b_kernel', gen_k4('k2b_kernel', 'wo', 1), 192, K4_LDS))
    ks.append(('k3_kernel', None, 256, K3_LDS))
    ks.append(('k4b_kernel', gen_k4('k4b_kernel', 'down', 1), 192, K4_LDS))
    s = hdr
    for n, g, grid, lds in ks:
        s += f'; @launch kernel={n} grid=({grid},1,1) block=(256,1,1) lds={lds}\n'
    s += '.amdgcn_target "amdgcn-amd-amdhsa--gfx950"\n.text\n'
    for n, g, grid, lds in ks:
        if g: s += g[0]
    s += '.section .rodata,"a"\n'
    for n, g, grid, lds in ks:
        if g: s += g[1]
    open(out, 'w').write(s)
build(f'cdna_kernels/{NAME}.s')
```
